```python
import torch

def _softmax(x, axis=-1):
    return torch.softmax(x, dim=axis)
def _gelu(x):
    return torch.nn.functional.gelu(x, approximate="tanh")
def _silu(x):
    return torch.nn.functional.silu(x)
def _sigmoid(x):
    return torch.sigmoid(x)
def _layernorm(x, axis=-1, eps=1e-5):
    m = x.mean(dim=axis, keepdim=True)
    v = x.var(dim=axis, keepdim=True, unbiased=False)
    return (x - m) / torch.sqrt(v + eps)
def _scatter_add(tgt, idx, src, axis=0):
    return tgt.clone().index_add_(axis, idx, src)
def _segment_sum(src, seg, n):
    out = torch.zeros((n,) + src.shape[1:], dtype=src.dtype)
    return out.index_add_(0, seg, src)
def _pad(x, pw):
    flat = tuple(v for pair in reversed(pw) for v in pair)
    return torch.nn.functional.pad(x, flat)

kernel_name = 'interleave_layers__sliding_local_dilated__swiglu_ffn__prompt'

def setup_inputs():

    _w = (lambda a: (lambda t: t.to(torch.bfloat16) if t.is_floating_point() else t)(torch.as_tensor(a)))
    def _A_setup():
        B, S, D = 1, 2048, 576
        return {
            "x": _w((lambda *s: torch.randn(*s, dtype=torch.bfloat16) * 0.05)(B, S, D)),
            "wqkv": _w((lambda *s: torch.randn(*s, dtype=torch.bfloat16) * 0.05)(D, 3 * D)),
            "wo": _w((lambda *s: torch.randn(*s, dtype=torch.bfloat16) * 0.05)(D, D)),
        }
    _A_in = _A_setup()

    def _B_setup():
        B, S, D, F = 1, 2048, 576, 4608
        return {
            "x": _w((lambda *s: torch.randn(*s, dtype=torch.bfloat16) * 0.05)(B, S, D)),
            "w_gate": _w((lambda *s: torch.randn(*s, dtype=torch.bfloat16) * 0.05)(D, F)),
            "w_up": _w((lambda *s: torch.randn(*s, dtype=torch.bfloat16) * 0.05)(D, F)),
            "w_down": _w((lambda *s: torch.randn(*s, dtype=torch.bfloat16) * 0.05)(F, D)),
        }
    _B_in = _B_setup()

    return {
        "A_x": _A_in["x"],
        "A_wqkv": _A_in["wqkv"],
        "A_wo": _A_in["wo"],
        "B_x": _B_in["x"],
        "B_w_gate": _B_in["w_gate"],
        "B_w_up": _B_in["w_up"],
        "B_w_down": _B_in["w_down"],
    }

def reference(A_x, A_wqkv, A_wo, B_x, B_w_gate, B_w_up, B_w_down):
    def _A_ref(x, wqkv, wo):
        B, S, D = x.shape
        H = 32; Dh = D // H
        W, dil = 8, 2
        qkv = (lambda x, *d: x.permute(*d))((x @ wqkv).reshape(B, S, 3, H, Dh), 2, 0, 3, 1, 4)
        q, k, v = qkv[0], qkv[1], qkv[2]
        scale = Dh ** -0.5
        pos = torch.arange(S)
        off = torch.arange(W) * dil
        idx = pos[:, None] - off[None, :]
        mask = idx >= 0
        idx_c = torch.where(mask, idx, 0).reshape(-1)
        kg = k[:, :, idx_c, :].reshape(B, H, S, W, Dh)
        vg = v[:, :, idx_c, :].reshape(B, H, S, W, Dh)
        logits = torch.einsum("bhsd,bhswd->bhsw", q, kg) * scale
        logits = torch.where(mask[None, None, :, :], logits, -1e9)
        attn = _softmax(logits, axis=-1)
        o = torch.einsum("bhsw,bhswd->bhsd", attn, vg)
        return (lambda x, *d: x.permute(*d))(o, 0, 2, 1, 3).reshape(B, S, D) @ wo

    def _B_ref(x, w_gate, w_up, w_down):
        g = _silu(x @ w_gate)
        u = x @ w_up
        return (g * u) @ w_down

    x = A_x
    x = x + _A_ref(_layernorm(x, axis=-1), A_wqkv, A_wo)
    x = x + _B_ref(_layernorm(x, axis=-1), B_w_gate, B_w_up, B_w_down)
    x = x + _A_ref(_layernorm(x, axis=-1), A_wqkv, A_wo)
    x = x + _B_ref(_layernorm(x, axis=-1), B_w_gate, B_w_up, B_w_down)
    return x
```

```python
import re

TRANS = ("v_exp_f32", "v_log_f32", "v_rcp_f32", "v_rsq_f32", "v_sqrt_f32", "v_sin_f32", "v_cos_f32")

_reg_re = re.compile(r"^(-|\|)?(abs\()?([vsa])(\d+|\[(\d+):(\d+)\])\)?\|?$")


def regs_of(tok):
    tok = tok.strip()
    if tok in ("vcc", "exec", "m0", "scc"):
        return {("x", tok)}
    if tok in ("vcc_lo", "vcc_hi"):
        return {("x", "vcc")}
    if tok in ("exec_lo", "exec_hi"):
        return {("x", "exec")}
    m = _reg_re.match(tok)
    if not m:
        return set()
    k = m.group(3)
    if m.group(5) is not None:
        return {(k, i) for i in range(int(m.group(5)), int(m.group(6)) + 1)}
    return {(k, int(m.group(4)))}


class Ins:
    __slots__ = ("text", "op", "cls", "wr", "rd", "passes", "dpp", "srcc", "is_lds_dma", "wide_store_data")

    def __init__(self, text):
        self.text = text
        body = text.split(";")[0].strip()
        parts = body.split(None, 1)
        self.op = parts[0]
        rest = parts[1] if len(parts) > 1 else ""
        ops = []
        depth = 0
        cur = ""
        for ch in rest:
            if ch in "[(":
                depth += 1
            if ch in "])":
                depth -= 1
            if ch == "," and depth == 0:
                ops.append(cur.strip())
                cur = ""
            else:
                cur += ch
        if cur.strip():
            ops.append(cur.strip())
        mods = ""
        if ops:
            sp = ops[-1].split(None, 1)
            ops[-1] = sp[0]
            if len(sp) > 1:
                mods = sp[1]
        op = self.op
        self.wr = set()
        self.rd = set()
        self.passes = 0
        self.dpp = ("row_" in mods) or ("quad_perm" in mods) or op.endswith("_dpp")
        self.srcc = set()
        self.is_lds_dma = False
        self.wide_store_data = set()
        R = [regs_of(o) for o in ops]
        if op.startswith("v_mfma"):
            self.cls = "mfma"
            self.wr = R[0]
            self.rd = R[1] | R[2] | R[3]
            self.srcc = R[3]
            self.passes = 8 if "32x32x16" in op else 4
        elif op.startswith("v_"):
            self.cls = "valu"
            if op.startswith("v_cmp"):
                self.wr = R[0]
                self.rd = set().union(*R[1:]) if len(R) > 1 else set()
            elif op.startswith("v_permlane") and "swap" in op:
                self.wr = R[0] | R[1]
                self.rd = R[0] | R[1]
            elif op in ("v_add_co_u32", "v_addc_co_u32", "v_sub_co_u32"):
                self.wr = R[0] | R[1]
                self.rd = set().union(*R[2:])
            else:
                self.wr = R[0]
                self.rd = set().union(*R[1:]) if len(R) > 1 else set()
                if op.startswith("v_fmac") or op.startswith("v_dot2c") or self.dpp:
                    self.rd |= R[0]
        elif op.startswith("buffer_") or op.startswith("global_"):
            self.cls = "vmem"
            if "lds" in mods.split():
                self.is_lds_dma = True
                self.rd = set().union(*R) | {("x", "m0")}
            elif "store" in op:
                self.rd = set().union(*R)
                if op.endswith("x4") or op.endswith("x3"):
                    self.wide_store_data = R[0] if op.startswith("buffer_") else R[1]
            else:
                self.wr = R[0]
                self.rd = set().union(*R[1:])
        elif op.startswith("ds_"):
            self.cls = "ds"
            if op.startswith("ds_write"):
                self.rd = set().union(*R)
            else:
                self.wr = R[0]
                self.rd = set().union(*R[1:])
        elif op.startswith("s_"):
            self.cls = "salu"
            if op in ("s_waitcnt", "s_barrier", "s_nop", "s_endpgm", "s_setprio", "s_branch") or op.startswith("s_cbranch") or op.startswith("s_cmp"):
                self.rd = set().union(*R) if R else set()
            else:
                self.wr = R[0] if R else set()
                self.rd = set().union(*R[1:]) if len(R) > 1 else set()
        else:
            self.cls = "other"


def nstates(ins):
    if ins.op == "s_nop":
        m = re.match(r"\s*s_nop\s+(\d+)", ins.text)
        return int(m.group(1)) + 1
    return 1


def need_states(prod, cons):
    n = 0
    pv = {r for r in prod.wr if r[0] in "va"}
    ps = {r for r in prod.wr if r[0] in "sx"}
    if prod.cls == "valu":
        if cons.cls == "mfma" and (pv & cons.rd):
            n = max(n, 2)
        if cons.cls == "mfma" and (("x", "exec") in ps):
            n = max(n, 4)
        if prod.op.split("_e")[0] in TRANS and cons.cls in ("valu",) and (pv & (cons.rd | cons.wr)):
            n = max(n, 1)
        if cons.op.startswith("v_readfirstlane") or cons.op.startswith("v_readlane"):
            if pv & cons.rd:
                n = max(n, 1)
            if ps & cons.rd:
                n = max(n, 4)
            if ("x", "exec") in ps:
                n = max(n, 4)
        if cons.cls == "valu" and (ps & cons.rd):
            n = max(n, 2)
        if cons.cls == "vmem" and (ps & cons.rd):
            n = max(n, 5)
        if cons.cls == "valu" and (cons.dpp or cons.op.startswith("v_permlane")) and (pv & cons.rd):
            n = max(n, 2)
        if cons.cls == "valu" and cons.dpp and ("x", "exec") in ps:
            n = max(n, 5)
    if prod.op.startswith("v_dot") and (pv & (cons.rd | cons.wr)):
        if cons.op != prod.op:
            n = max(n, 3)
    if prod.cls == "mfma":
        big = 12 if prod.passes == 8 else 8
        if cons.cls == "mfma":
            ab = cons.rd - cons.srcc
            if prod.wr & ab:
                n = max(n, big)
            if (prod.wr & cons.srcc) and (prod.wr != cons.srcc):
                n = max(n, 10 if prod.passes == 8 else 6)
            if (prod.wr & cons.wr) and (prod.wr != cons.srcc):
                n = max(n, big)
        else:
            if prod.wr & (cons.rd | cons.wr):
                n = max(n, big)
            if cons.cls == "valu" and (prod.srcc & cons.wr):
                n = max(n, 7 if prod.passes == 8 else 3)
    if prod.cls == "salu" and ("x", "m0") in prod.wr and cons.is_lds_dma:
        n = max(n, 1)
    if prod.cls == "vmem" and prod.wide_store_data and (prod.wide_store_data & cons.wr):
        n = max(n, 2)
    return n


class Asm:
    def __init__(self):
        self.lines = []

    def raw(self, s):
        self.lines.append(s)

    def label(self, name):
        self.lines.append(name + ":")

    def __call__(self, s):
        for l in s.strip().split("\n"):
            l = l.strip()
            if not l or l.startswith(";"):
                continue
            self.lines.append(Ins(l))

    def comment(self, s):
        self.lines.append("    ; " + s)

    def finish(self):
        out = []
        hist = []
        for l in self.lines:
            if isinstance(l, str):
                out.append(l)
                continue
            need = 0
            dist = 0
            for p in reversed(hist):
                r = need_states(p, l)
                if r > dist:
                    need = max(need, r - dist)
                dist += nstates(p)
                if dist > 24:
                    break
            while need > 0:
                k = min(need, 16)
                nop = Ins("s_nop %d" % (k - 1))
                out.append("    " + nop.text + "    ; hazard pad")
                hist.append(nop)
                need -= k
            out.append("    " + l.text)
            hist.append(l)
            if len(hist) > 40:
                hist = hist[-40:]
        return "\n".join(out) + "\n"


def v(a, n=1):
    return "v%d" % a if n == 1 else "v[%d:%d]" % (a, a + n - 1)


def s(a, n=1):
    return "s%d" % a if n == 1 else "s[%d:%d]" % (a, a + n - 1)
```

```python
import sys, os
sys.path.insert(0, os.path.dirname(os.path.abspath(__file__)))
from asmlib import Asm, v, s

S_LEN, D, F = 2048, 576, 4608
ROWB = D * 2
ACT_BYTES = S_LEN * ROWB
WS_XN = 0
WS_O = 4 << 20
WS_X1 = 8 << 20
WS_X2 = 12 << 20
WS_H = 16 << 20
WS_P = 48 << 20
H_BYTES = S_LEN * F * 2
P_SPLIT = 4
P_ONE = S_LEN * D * 4
KA_X, KA_WQKV, KA_WO, KA_BX, KA_WG, KA_WU, KA_WD, KA_OUT, KA_DBG, KA_WS = [8 * i for i in range(10)]

kernels = []
launches = []


def srd(a, d, lo, hi, size, off=None):
    if off is None:
        a(f"s_mov_b32 s{d}, s{lo}")
        a(f"s_and_b32 s{d+1}, s{hi}, 0xffff")
    else:
        a(f"s_add_u32 s{d}, s{lo}, {off}")
        a(f"s_addc_u32 s{d+1}, s{hi}, 0")
        a(f"s_and_b32 s{d+1}, s{d+1}, 0xffff")
    a(f"s_mov_b32 s{d+2}, {size}")
    a(f"s_mov_b32 s{d+3}, 0x00020000")


def begin(a, name, nwg):
    a.raw(".p2align 8")
    a.raw(f".globl {name}")
    a.raw(f".type {name},@function")
    a.label(name)
    a(f"s_cmp_ge_u32 s2, {nwg}")
    a(f"s_cbranch_scc1 {name}_end")


def end(a, name, vg, sg):
    a.label(f"{name}_end")
    a("s_endpgm")
    kernels.append((name, a.finish(), vg, sg))


def wave_sum(a, r, sdst):
    for sh in (1, 2, 4, 8):
        a(f"v_add_f32_dpp v{r}, v{r}, v{r} row_shr:{sh} row_mask:0xf bank_mask:0xf")
    a(f"v_add_f32_dpp v{r}, v{r}, v{r} row_bcast:15 row_mask:0xa bank_mask:0xf")
    a(f"v_add_f32_dpp v{r}, v{r}, v{r} row_bcast:31 row_mask:0xc bank_mask:0xf")
    a(f"v_readlane_b32 s{sdst}, v{r}, 63")


def unpack(a, src, dlo, dhi):
    a(f"v_lshlrev_b32 v{dlo}, 16, v{src}")
    a(f"v_and_b32 v{dhi}, 0xffff0000, v{src}")


def ln_kernel(name, mode, src, xout, do_ln):
    a = Asm()
    nwg = S_LEN // 4
    begin(a, name, nwg)
    a(f"s_load_dwordx2 s[4:5], s[0:1], {KA_WS}")
    if src[0] == 'ka':
        a(f"s_load_dwordx2 s[6:7], s[0:1], {src[1]}")
    if xout is not None and xout[0] == 'ka':
        a(f"s_load_dwordx2 s[28:29], s[0:1], {xout[1]}")
    a("v_lshrrev_b32 v1, 6, v0")
    a("v_and_b32 v0, 63, v0")
    a("v_readfirstlane_b32 s3, v1")
    a("s_lshl_b32 s30, s2, 2")
    a("s_add_u32 s30, s30, s3")
    a("s_waitcnt lgkmcnt(0)")
    if src[0] == 'ka':
        srd(a, 8, 6, 7, ACT_BYTES)
    else:
        srd(a, 8, 4, 5, ACT_BYTES, src[1])
    srd(a, 12, 4, 5, ACT_BYTES, WS_XN)
    if xout is not None:
        if xout[0] == 'ka':
            srd(a, 16, 28, 29, ACT_BYTES)
        else:
            srd(a, 16, 4, 5, ACT_BYTES, xout[1])
    a(f"s_mul_i32 s31, s30, {ROWB}")
    a("v_lshlrev_b32 v2, 4, v0")
    for r in range(8, 12):
        a(f"v_mov_b32 v{r}, 0")
    a("buffer_load_dwordx4 v[4:7], v2, s[8:11], s31 offen")
    if mode == 'reduce':
        srd(a, 20, 4, 5, P_ONE * P_SPLIT, WS_P)
        a(f"s_mul_i32 s32, s30, {D*4}")
        a("v_lshlrev_b32 v3, 5, v0")
        for p in range(P_SPLIT):
            for r in range(8):
                a(f"v_mov_b32 v{40+16*p+r}, 0")
        for p in range(P_SPLIT):
            a(f"s_add_u32 s{33+p}, s32, {p*P_ONE}")
            a(f"buffer_load_dwordx4 v[{32+16*p}:{35+16*p}], v3, s[20:23], s{33+p} offen")
            a(f"buffer_load_dwordx4 v[{36+16*p}:{39+16*p}], v3, s[20:23], s{33+p} offen offset:16")
    a("s_mov_b64 exec, 0xff")
    a("buffer_load_dwordx4 v[8:11], v2, s[8:11], s31 offen offset:1024")
    if mode == 'reduce':
        for p in range(P_SPLIT):
            a(f"buffer_load_dwordx4 v[{40+16*p}:{43+16*p}], v3, s[20:23], s{33+p} offen offset:2048")
            a(f"buffer_load_dwordx4 v[{44+16*p}:{47+16*p}], v3, s[20:23], s{33+p} offen offset:2064")
    a("s_mov_b64 exec, -1")
    a("s_waitcnt vmcnt(0)")
    for i in range(8):
        unpack(a, 4 + i, 16 + 2 * i, 17 + 2 * i)
    if mode == 'reduce':
        for e in range(16):
            base = 32 + e
            a(f"v_add_f32 v{base}, v{base}, v{base+16}")
            a(f"v_add_f32 v{base}, v{base}, v{base+32}")
            a(f"v_add_f32 v{base}, v{base}, v{base+48}")
        for i in range(8):
            a(f"v_cvt_pk_bf16_f32 v{4+i}, v{32+2*i}, v{33+2*i}")
        for i in range(8):
            unpack(a, 4 + i, 32 + 2 * i, 33 + 2 * i)
        for e in range(16):
            a(f"v_add_f32 v{16+e}, v{16+e}, v{32+e}")
        for i in range(8):
            a(f"v_cvt_pk_bf16_f32 v{4+i}, v{16+2*i}, v{17+2*i}")
        for i in range(8):
            unpack(a, 4 + i, 16 + 2 * i, 17 + 2 * i)
    if xout is not None:
        a("buffer_store_dwordx4 v[4:7], v2, s[16:19], s31 offen")
        a("s_mov_b64 exec, 0xff")
        a("buffer_store_dwordx4 v[8:11], v2, s[16:19], s31 offen offset:1024")
        a("s_mov_b64 exec, -1")
    if do_ln:
        a("v_add_f32 v48, v16, v17")
        for e in range(2, 16):
            a(f"v_add_f32 v48, v48, v{16+e}")
        wave_sum(a, 48, 40)
        a(f"s_mov_b32 s41, 0x{f32bits(1.0/D):08x}")
        a("v_mov_b32 v49, s40")
        a("v_mul_f32 v49, s41, v49")
        a("v_mov_b32 v50, 0")
        a("v_mov_b32 v51, 0")
        for e in range(8):
            a(f"v_sub_f32 v52, v{16+e}, v49")
            a(f"v_fmac_f32 v50, v52, v52")
        a("s_mov_b64 exec, 0xff")
        for e in range(8, 16):
            a(f"v_sub_f32 v52, v{16+e}, v49")
            a(f"v_fmac_f32 v51, v52, v52")
        a("s_mov_b64 exec, -1")
        a("v_add_f32 v50, v50, v51")
        wave_sum(a, 50, 42)
        a("v_mov_b32 v51, s42")
        a("v_mul_f32 v51, s41, v51")
        a("v_cvt_pk_bf16_f32 v52, v49, v51")
        unpack(a, 52, 49, 51)
        a(f"v_add_f32 v51, 0x{f32bits(1e-5):08x}, v51")
        a("v_cvt_pk_bf16_f32 v52, v51, v51")
        a("v_lshlrev_b32 v51, 16, v52")
        a("v_sqrt_f32 v51, v51")
        a("v_cvt_pk_bf16_f32 v52, v51, v51")
        a("v_lshlrev_b32 v51, 16, v52")
        a("v_rcp_f32 v51, v51")
        for e in range(16):
            a(f"v_sub_f32 v{16+e}, v{16+e}, v49")
        for i in range(8):
            a(f"v_cvt_pk_bf16_f32 v{56+i}, v{16+2*i}, v{17+2*i}")
        for i in range(8):
            unpack(a, 56 + i, 16 + 2 * i, 17 + 2 * i)
        for e in range(16):
            a(f"v_mul_f32 v{16+e}, v{16+e}, v51")
        for i in range(8):
            a(f"v_cvt_pk_bf16_f32 v{56+i}, v{16+2*i}, v{17+2*i}")
        a("buffer_store_dwordx4 v[56:59], v2, s[12:15], s31 offen")
        a("s_mov_b64 exec, 0xff")
        a("buffer_store_dwordx4 v[60:63], v2, s[12:15], s31 offen offset:1024")
        a("s_mov_b64 exec, -1")
    end(a, name, 96, 48)
    return nwg


def f32bits(x):
    import struct
    return struct.unpack("<I", struct.pack("<f", x))[0]


class G:
    pass


def gemm_kernel(name, nwg, BM, nW, WM, WN, TM, TN, nsteps, NS, lda, ldw, setup, epilogue, wmode='plain',
                extra_lds=0):
    a = Asm()
    g = G()
    nwaves = WM * WN
    nA = BM // 16
    WST = 9216 if wmode == 'plain' else 8192
    nWs = WST // 1024
    T = nA + nW * nWs
    P = -(-T // nwaves)
    STAGE = BM * 64 + nW * WST
    DUMMY = NS * STAGE
    lds_bytes = max(NS * STAGE + 1024, extra_lds)
    g.lds_bytes = lds_bytes
    g.TM, g.TN, g.nW, g.WM, g.WN = TM, TN, nW, WM, WN
    begin(a, name, nwg)
    a("v_lshrrev_b32 v1, 6, v0")
    a("v_and_b32 v0, 63, v0")
    a("v_readfirstlane_b32 s3, v1")
    setup(a, g)
    ACC = 8
    nacc = nW * TN * TM * 4
    AF = ACC + nacc
    WF = AF + TM * 4
    AADR = WF + nW * TN * 4
    nwadr = NS if wmode == 'plain' else NS * TN
    WADR = AADR + NS
    DOFF = WADR + nwadr
    VEND = DOFF + P
    g.ACC, g.VEND, g.AF, g.WF = ACC, VEND, AF, WF
    acc = lambda w, j, mt: ACC + ((w * TN + j) * TM + mt) * 4
    g.acc = acc
    a(f"s_mul_i32 s63, s3, {(65536 + WM - 1)//WM}")
    a("s_lshr_b32 s63, s63, 16")
    a(f"s_mul_i32 s62, s63, {WM}")
    a("s_sub_u32 s62, s3, s62")
    for p in range(P):
        SR, SO, ST, SL = 32 + 4 * p, 48 + p, 52 + p, 56 + p
        a(f"s_add_u32 s4, s3, {p*nwaves}")
        a("v_lshrrev_b32 v2, 4, v0")
        a("v_sub_u32 v2, 0, v2")
        a("v_xor_b32 v2, v2, v0")
        a("v_and_b32 v2, 3, v2")
        a("v_lshlrev_b32 v2, 4, v2")
        a("v_lshrrev_b32 v3, 2, v0")
        a("s_lshl_b32 s5, s4, 4")
        a("v_add_u32 v3, s5, v3")
        a(f"s_mov_b32 s5, {lda}")
        a("v_mul_lo_u32 v3, v3, s5")
        a("v_add_u32 v2, v2, v3")
        g.act_voff_hook(a, 2) if hasattr(g, 'act_voff_hook') else None
        a(f"s_sub_u32 s5, s4, {nA}")
        a(f"s_cmp_ge_u32 s5, {nWs}")
        a("s_cselect_b32 s6, 1, 0")
        a(f"s_mul_i32 s7, s6, {nWs}")
        a("s_sub_u32 s5, s5, s7")
        if wmode == 'plain':
            a("s_lshl_b32 s5, s5, 6")
            a("v_add_u32 v3, s5, v0")
            a("v_mul_u32_u24 v4, 3641, v3")
            a("v_lshrrev_b32 v4, 16, v4")
            a("v_mul_u32_u24 v5, 18, v4")
            a("v_sub_u32 v5, v3, v5")
            a("v_lshlrev_b32 v5, 4, v5")
        else:
            a("s_lshl_b32 s5, s5, 2")
            a("v_lshrrev_b32 v4, 4, v0")
            a("v_add_u32 v4, s5, v4")
            a("v_and_b32 v5, 15, v0")
            a("v_lshrrev_b32 v6, 1, v5")
            a("v_and_b32 v7, 7, v4")
            a("v_xor_b32 v6, v6, v7")
            a("v_and_b32 v5, 1, v5")
            a("v_lshl_add_u32 v5, v6, 1, v5")
            a("v_min_u32 v5, 14, v5")
            a("v_mul_u32_u24 v6, 13108, v5")
            a("v_lshrrev_b32 v6, 16, v6")
            a("v_mul_u32_u24 v7, 5, v6")
            a("v_sub_u32 v5, v5, v7")
            a("v_lshlrev_b32 v5, 4, v5")
            a(f"v_mul_u32_u24 v6, {ROWB}, v6")
            a("v_add_u32 v5, v5, v6")
        a("v_and_b32 v6, 0x13, v4")
        a("v_and_b32 v7, 4, v4")
        a("v_lshl_or_b32 v6, v7, 1, v6")
        a("v_and_b32 v7, 8, v4")
        a("v_lshrrev_b32 v7, 1, v7")
        a("v_or_b32 v6, v6, v7")
        a(f"s_mov_b32 s5, {ldw}")
        a("v_mul_lo_u32 v6, v6, s5")
        a("v_add_u32 v5, v5, v6")
        a(f"s_cmp_lt_u32 s4, {nA}")
        a("s_cselect_b64 vcc, -1, 0")
        a(f"v_cndmask_b32 v{DOFF+p}, v5, v2, vcc")
        for i in range(4):
            a(f"s_cmp_eq_u32 s6, 1")
            a(f"s_cselect_b32 s{SR+i}, s{16+i}, s{12+i}")
            a(f"s_cmp_lt_u32 s4, {nA}")
            a(f"s_cselect_b32 s{SR+i}, s{8+i}, s{SR+i}")
        a(f"s_cselect_b32 s{ST}, 64, {32*ldw}")
        a(f"s_mov_b32 s{SO}, 0")
        a(f"s_lshl_b32 s{SL}, s4, 10")
        if (p + 1) * nwaves > T:
            a(f"s_cmp_ge_u32 s4, {T}")
            a("s_cselect_b64 vcc, -1, 0")
            a(f"v_cndmask_b32 v{DOFF+p}, v{DOFF+p}, 0, vcc")
            a(f"s_cselect_b32 s{ST}, 0, s{ST}")
            for i in range(4):
                a(f"s_cselect_b32 s{SR+i}, s{12+i}, s{SR+i}")
            a(f"s_cselect_b32 s{60}, 1, 0")
    a("v_lshrrev_b32 v2, 2, v0")
    a("v_sub_u32 v2, 0, v2")
    a("v_lshrrev_b32 v3, 4, v0")
    a("v_xor_b32 v2, v2, v3")
    a("v_and_b32 v2, 3, v2")
    a("v_lshlrev_b32 v2, 4, v2")
    a("v_and_b32 v3, 15, v0")
    a("v_lshl_add_u32 v2, v3, 6, v2")
    a(f"s_mul_i32 s4, s62, {TM*1024}")
    a("v_add_u32 v2, s4, v2")
    for st in range(NS):
        a(f"v_add_u32 v{AADR+st}, {st*STAGE}, v2")
    a("v_lshrrev_b32 v3, 5, v0")
    a("v_lshlrev_b32 v3, 4, v3")
    a("v_bfe_u32 v4, v0, 4, 1")
    a("v_lshl_add_u32 v3, v4, 2, v3")
    a("v_bfe_u32 v4, v0, 2, 2")
    a("v_add_u32 v3, v3, v4")
    a("v_and_b32 v5, 3, v0")
    a("v_lshlrev_b32 v5, 3, v5")
    if wmode == 'plain':
        a("v_mul_u32_u24 v6, 288, v3")
        a("v_add_u32 v6, v6, v5")
        a(f"s_mul_i32 s4, s63, {TN*32}")
        a("v_add_u32 v6, s4, v6")
        for st in range(NS):
            a(f"v_add_u32 v{WADR+st}, {st*STAGE + BM*64}, v6")
    else:
        a("v_and_b32 v7, 7, v3")
        for jj in range(TN):
            a(f"s_mul_i32 s4, s63, {TN}")
            a(f"s_add_u32 s4, s4, {jj}")
            a("v_xor_b32 v6, s4, v7")
            a("v_lshlrev_b32 v6, 5, v6")
            a("v_lshl_add_u32 v6, v3, 8, v6")
            a("v_add_u32 v6, v6, v5")
            for st in range(NS):
                a(f"v_add_u32 v{WADR+st*TN+jj}, {st*STAGE + BM*64}, v6")

    def dma(stage_idx):
        st = stage_idx % NS
        for p in range(P):
            SR, SO, ST, SL = 32 + 4 * p, 48 + p, 52 + p, 56 + p
            if (p + 1) * nwaves > T:
                a(f"s_add_u32 s4, s{SL}, {st*STAGE}")
                a("s_cmp_eq_u32 s60, 1")
                a(f"s_cselect_b32 m0, {DUMMY}, s4")
            else:
                a(f"s_add_u32 m0, s{SL}, {st*STAGE}")
            a(f"buffer_load_dwordx4 v{DOFF+p}, s[{SR}:{SR+3}], s{SO} offen lds")
            a(f"s_add_u32 s{SO}, s{SO}, s{ST}")

    for i in range(min(NS - 1, nsteps)):
        dma(i)
    for it in range(nsteps):
        st = it % NS
        ahead = min(it + NS - 2, nsteps - 1) - it
        a(f"s_waitcnt vmcnt({ahead*P})")
        a("s_barrier")
        if it + NS - 1 < nsteps:
            dma(it + NS - 1)
        for mt in range(TM):
            a(f"ds_read_b128 v[{AF+4*mt}:{AF+4*mt+3}], v{AADR+st} offset:{mt*1024}")
        for w in range(nW):
            for j in range(TN):
                r = WF + (w * TN + j) * 4
                if wmode == 'plain':
                    a(f"ds_read_b64_tr_b16 v[{r}:{r+1}], v{WADR+st} offset:{w*9216 + j*32}")
                    a(f"ds_read_b64_tr_b16 v[{r+2}:{r+3}], v{WADR+st} offset:{w*9216 + j*32 + 2304}")
                else:
                    a(f"ds_read_b64_tr_b16 v[{r}:{r+1}], v{WADR+st*TN+j} offset:0")
                    a(f"ds_read_b64_tr_b16 v[{r+2}:{r+3}], v{WADR+st*TN+j} offset:2048")
        nrd = TM + 2 * nW * TN
        done = TM
        for w in range(nW):
            for j in range(TN):
                done += 2
                a(f"s_waitcnt lgkmcnt({nrd-done})")
                r = WF + (w * TN + j) * 4
                for mt in range(TM):
                    c = acc(w, j, mt)
                    cin = "0" if it == 0 else f"v[{c}:{c+3}]"
                    a(f"v_mfma_f32_16x16x32_bf16 v[{c}:{c+3}], v[{r}:{r+3}], v[{AF+4*mt}:{AF+4*mt+3}], {cin}")
    epilogue(a, g)
    end(a, name, max(VEND, getattr(g, 'vmax', 0)), 72)
    return g


def ffn_up():
    name = "ffn_up_kernel"

    def setup(a, g):
        a(f"s_load_dwordx2 s[4:5], s[0:1], {KA_WS}")
        a(f"s_load_dwordx4 s[64:67], s[0:1], {KA_WG}")
        a("s_and_b32 s68, s2, 7")
        a("s_lshr_b32 s69, s2, 3")
        a("s_and_b32 s70, s69, 3")
        a("s_lshl_b32 s68, s68, 2")
        a("s_add_u32 s68, s68, s70")
        a("s_lshr_b32 s69, s69, 2")
        a("s_waitcnt lgkmcnt(0)")
        a(f"s_mul_i32 s6, s69, {256*ROWB}")
        a(f"s_add_u32 s7, s6, {WS_XN}")
        srd(a, 8, 4, 5, 0, "s7")
        a(f"s_sub_u32 s10, {ACT_BYTES}, s6")
        a("s_mul_i32 s6, s68, 288")
        srd(a, 12, 64, 65, 0, "s6")
        a(f"s_sub_u32 s14, {D*F*2}, s6")
        srd(a, 16, 66, 67, 0, "s6")
        a(f"s_sub_u32 s18, {D*F*2}, s6")
        srd(a, 20, 4, 5, H_BYTES, WS_H)

    def epilogue(a, g):
        TM, TN = g.TM, g.TN
        a("s_lshl_b32 s4, s69, 8")
        a(f"s_mul_i32 s5, s62, {TM*16}")
        a("s_add_u32 s4, s4, s5")
        a("v_and_b32 v2, 15, v0")
        a("v_add_u32 v2, s4, v2")
        a(f"s_mov_b32 s4, {F*2}")
        a("v_mul_lo_u32 v2, v2, s4")
        a("s_mul_i32 s4, s68, 288")
        a(f"s_mul_i32 s5, s63, {TN*32}")
        a("s_add_u32 s4, s4, s5")
        a("v_lshrrev_b32 v3, 4, v0")
        a("v_lshlrev_b32 v3, 3, v3")
        a("v_add3_u32 v2, v2, v3, s4")
        a(f"s_mov_b32 s6, 0x{f32bits(-1.4426950408889634):08x}")
        T0 = g.AF
        for mt in range(TM):
            for j in range(TN):
                G_, U_ = g.acc(0, j, mt), g.acc(1, j, mt)
                a(f"v_cvt_pk_bf16_f32 v{T0}, v{G_}, v{G_+1}")
                a(f"v_cvt_pk_bf16_f32 v{T0+1}, v{G_+2}, v{G_+3}")
                a(f"v_cvt_pk_bf16_f32 v{T0+2}, v{U_}, v{U_+1}")
                a(f"v_cvt_pk_bf16_f32 v{T0+3}, v{U_+2}, v{U_+3}")
                unpack(a, T0, G_, G_ + 1)
                unpack(a, T0 + 1, G_ + 2, G_ + 3)
                unpack(a, T0 + 2, U_, U_ + 1)
                unpack(a, T0 + 3, U_ + 2, U_ + 3)
                for e in range(4):
                    a(f"v_mul_f32 v{T0+4+e}, s6, v{G_+e}")
                for e in range(4):
                    a(f"v_exp_f32 v{T0+4+e}, v{T0+4+e}")
                for e in range(4):
                    a(f"v_add_f32 v{T0+4+e}, 1.0, v{T0+4+e}")
                for e in range(4):
                    a(f"v_rcp_f32 v{T0+4+e}, v{T0+4+e}")
                for e in range(4):
                    a(f"v_mul_f32 v{G_+e}, v{G_+e}, v{T0+4+e}")
                a(f"v_cvt_pk_bf16_f32 v{T0}, v{G_}, v{G_+1}")
                a(f"v_cvt_pk_bf16_f32 v{T0+1}, v{G_+2}, v{G_+3}")
                unpack(a, T0, G_, G_ + 1)
                unpack(a, T0 + 1, G_ + 2, G_ + 3)
                for e in range(4):
                    a(f"v_mul_f32 v{G_+e}, v{G_+e}, v{U_+e}")
                a(f"v_cvt_pk_bf16_f32 v{U_}, v{G_}, v{G_+1}")
                a(f"v_cvt_pk_bf16_f32 v{U_+1}, v{G_+2}, v{G_+3}")
                a(f"buffer_store_dwordx2 v[{U_}:{U_+1}], v2, s[20:23], 0 offen offset:{j*32}")
            if mt + 1 < TM:
                a(f"v_add_u32 v2, {16*F*2}, v2")

    g = gemm_kernel(name, 256, BM=256, nW=2, WM=4, WN=3, TM=4, TN=3, nsteps=18, NS=4, lda=ROWB, ldw=F * 2,
                    setup=setup, epilogue=epilogue)
    return name, (256, 1, 1), (768, 1, 1), g.lds_bytes


def ffn_down():
    name = "ffn_down_kernel"

    def setup(a, g):
        a(f"s_load_dwordx2 s[4:5], s[0:1], {KA_WS}")
        a(f"s_load_dwordx2 s[64:65], s[0:1], {KA_WD}")
        a("s_and_b32 s68, s2, 7")
        a("s_lshr_b32 s69, s2, 3")
        a("s_lshr_b32 s70, s68, 1")
        a("s_and_b32 s68, s68, 1")
        a("s_lshl_b32 s68, s68, 3")
        a("s_lshr_b32 s71, s69, 2")
        a("s_add_u32 s68, s68, s71")
        a("s_and_b32 s69, s69, 3")
        a("s_waitcnt lgkmcnt(0)")
        a(f"s_mul_i32 s6, s68, {128*F*2}")
        a(f"s_mul_i32 s7, s70, {(F//P_SPLIT)*2}")
        a("s_add_u32 s6, s6, s7")
        a(f"s_add_u32 s7, s6, {WS_H}")
        srd(a, 8, 4, 5, 0, "s7")
        a(f"s_sub_u32 s10, {H_BYTES}, s6")
        a(f"s_mul_i32 s6, s70, {(F//P_SPLIT)*ROWB}")
        a("s_mul_i32 s7, s69, 288")
        a("s_add_u32 s6, s6, s7")
        srd(a, 12, 64, 65, 0, "s6")
        a(f"s_sub_u32 s14, {F*D*2}, s6")
        for i in range(4):
            a(f"s_mov_b32 s{16+i}, s{12+i}")
        srd(a, 20, 4, 5, P_ONE * P_SPLIT, WS_P)

    def epilogue(a, g):
        TM, TN = g.TM, g.TN
        a("s_lshl_b32 s4, s68, 7")
        a(f"s_mul_i32 s5, s62, {TM*16}")
        a("s_add_u32 s4, s4, s5")
        a("v_and_b32 v2, 15, v0")
        a("v_add_u32 v2, s4, v2")
        a(f"v_mul_u32_u24 v2, {D*4}, v2")
        a("s_mul_i32 s4, s69, 576")
        a(f"s_mul_i32 s5, s63, {TN*64}")
        a("s_add_u32 s4, s4, s5")
        a(f"s_mul_i32 s5, s70, {P_ONE}")
        a("s_add_u32 s4, s4, s5")
        a("v_lshrrev_b32 v3, 4, v0")
        a("v_lshlrev_b32 v3, 4, v3")
        a("v_add3_u32 v2, v2, v3, s4")
        for mt in range(TM):
            for j in range(TN):
                c = g.acc(0, j, mt)
                a(f"buffer_store_dwordx4 v[{c}:{c+3}], v2, s[20:23], 0 offen offset:{j*64}")
            if mt + 1 < TM:
                a(f"v_add_u32 v2, {16*D*4}, v2")

    g = gemm_kernel(name, 256, BM=128, nW=1, WM=4, WN=3, TM=2, TN=3, nsteps=(F // P_SPLIT) // 32, NS=6,
                    lda=F * 2, ldw=ROWB, setup=setup, epilogue=epilogue)
    return name, (256, 1, 1), (768, 1, 1), g.lds_bytes


def wo_kernel(name, res):
    def setup(a, g):
        a(f"s_load_dwordx2 s[4:5], s[0:1], {KA_WS}")
        a(f"s_load_dwordx2 s[64:65], s[0:1], {KA_WO}")
        if res[0] == 'ka':
            a(f"s_load_dwordx2 s[66:67], s[0:1], {res[1]}")
        a("s_and_b32 s68, s2, 7")
        a("s_lshr_b32 s69, s2, 3")
        a("s_lshl_b32 s68, s68, 3")
        a("s_lshr_b32 s71, s69, 2")
        a("s_add_u32 s68, s68, s71")
        a("s_and_b32 s69, s69, 3")
        a("s_waitcnt lgkmcnt(0)")
        a(f"s_mul_i32 s6, s68, {32*ROWB}")
        a(f"s_add_u32 s7, s6, {WS_O}")
        srd(a, 8, 4, 5, 0, "s7")
        a(f"s_sub_u32 s10, {ACT_BYTES}, s6")
        a("s_mul_i32 s6, s69, 288")
        srd(a, 12, 64, 65, 0, "s6")
        a(f"s_sub_u32 s14, {D*D*2}, s6")
        for i in range(4):
            a(f"s_mov_b32 s{16+i}, s{12+i}")
        srd(a, 20, 4, 5, ACT_BYTES, WS_X1)
        if res[0] == 'ka':
            srd(a, 24, 66, 67, ACT_BYTES)
        else:
            srd(a, 24, 4, 5, ACT_BYTES, res[1])

    def epilogue(a, g):
        TM, TN = g.TM, g.TN
        a("s_lshl_b32 s4, s68, 5")
        a(f"s_mul_i32 s5, s62, {TM*16}")
        a("s_add_u32 s4, s4, s5")
        a("v_and_b32 v2, 15, v0")
        a("v_add_u32 v2, s4, v2")
        a(f"v_mul_u32_u24 v2, {ROWB}, v2")
        a("s_mul_i32 s4, s69, 288")
        a(f"s_mul_i32 s5, s63, {TN*32}")
        a("s_add_u32 s4, s4, s5")
        a("v_lshrrev_b32 v3, 4, v0")
        a("v_lshlrev_b32 v3, 3, v3")
        a("v_add3_u32 v2, v2, v3, s4")
        T0 = g.AF
        for mt in range(TM):
            for j in range(TN):
                a(f"buffer_load_dwordx2 v[{T0+2*j}:{T0+2*j+1}], v2, s[24:27], 0 offen offset:{j*32}")
            a("s_waitcnt vmcnt(0)")
            for j in range(TN):
                c = g.acc(0, j, mt)
                R = T0 + 8
                a(f"v_cvt_pk_bf16_f32 v{R}, v{c}, v{c+1}")
                a(f"v_cvt_pk_bf16_f32 v{R+1}, v{c+2}, v{c+3}")
                unpack(a, R, c, c + 1)
                unpack(a, R + 1, c + 2, c + 3)
                unpack(a, T0 + 2 * j, R + 2, R + 3)
                unpack(a, T0 + 2 * j + 1, R + 4, R + 5)
                for e in range(4):
                    a(f"v_add_f32 v{c+e}, v{c+e}, v{R+2+e}")
                a(f"v_cvt_pk_bf16_f32 v{c}, v{c}, v{c+1}")
                a(f"v_cvt_pk_bf16_f32 v{c+1}, v{c+2}, v{c+3}")
                a(f"buffer_store_dwordx2 v[{c}:{c+1}], v2, s[20:23], 0 offen offset:{j*32}")
            if mt + 1 < TM:
                a(f"v_add_u32 v2, {16*ROWB}, v2")

    g = gemm_kernel(name, 256, BM=32, nW=1, WM=2, WN=3, TM=1, TN=3, nsteps=18, NS=6, lda=ROWB, ldw=ROWB,
                    setup=setup, epilogue=epilogue)
    return name, (256, 1, 1), (384, 1, 1), g.lds_bytes


def qkv_attn():
    name = "qkv_attn_kernel"
    QROW = 304

    def setup(a, g):
        a(f"s_load_dwordx2 s[4:5], s[0:1], {KA_WS}")
        a(f"s_load_dwordx2 s[64:65], s[0:1], {KA_WQKV}")
        a("s_and_b32 s68, s2, 7")
        a("s_lshr_b32 s69, s2, 3")
        a("s_lshr_b32 s70, s68, 1")
        a("s_lshl_b32 s70, s70, 2")
        a("s_and_b32 s71, s69, 3")
        a("s_add_u32 s70, s70, s71")
        a("s_and_b32 s68, s68, 1")
        a("s_lshl_b32 s68, s68, 3")
        a("s_lshr_b32 s69, s69, 2")
        a("s_add_u32 s69, s69, s68")
        a("s_mov_b32 s68, s70")
        a("s_waitcnt lgkmcnt(0)")
        srd(a, 8, 4, 5, ACT_BYTES, WS_XN)
        a("s_mul_i32 s6, s69, 72")
        srd(a, 12, 64, 65, 0, "s6")
        a(f"s_sub_u32 s14, {D*3*D*2}, s6")
        for i in range(4):
            a(f"s_mov_b32 s{16+i}, s{12+i}")
        srd(a, 20, 4, 5, ACT_BYTES, WS_O)
        a(f"s_mul_i32 s61, s68, {128*ROWB}")
        a(f"s_sub_u32 s61, s61, {16*ROWB}")

        def hook(a, r):
            a(f"v_add_u32 v{r}, s61, v{r}")
        g.act_voff_hook = hook

    def epilogue(a, g):
        TM, TN = g.TM, g.TN
        T0 = g.AF
        a("s_barrier")
        a("v_and_b32 v2, 15, v0")
        a(f"s_mul_i32 s4, s62, {TM*16}")
        a("v_add_u32 v2, s4, v2")
        a(f"v_mul_u32_u24 v2, {QROW}, v2")
        for jj in range(TN):
            for pr in range(2):
                a(f"s_mul_i32 s4, s63, {TN*16}")
                a(f"s_add_u32 s4, s4, {jj*16 + 2*pr}")
                a("v_lshrrev_b32 v3, 4, v0")
                a("v_lshl_add_u32 v3, v3, 2, s4")
                a("v_mul_u32_u24 v4, 1639, v3")
                a("v_lshrrev_b32 v4, 16, v4")
                a("v_mul_u32_u24 v5, 40, v4")
                a("v_sub_u32 v5, v3, v5")
                a("v_cmp_le_u32 vcc, 18, v5")
                a("v_cndmask_b32 v6, 0, 1, vcc")
                a("v_mul_u32_u24 v7, 18, v6")
                a("v_sub_u32 v7, v5, v7")
                a("v_lshl_add_u32 v6, v4, 1, v6")
                a("v_mul_u32_u24 v6, 48, v6")
                a("v_lshl_add_u32 v6, v7, 1, v6")
                a("v_cmp_le_u32 vcc, 36, v5")
                a("v_mov_b32 v7, 288")
                a("v_cndmask_b32 v6, v6, v7, vcc")
                a("v_cmp_le_u32 vcc, 120, v3")
                a("v_cndmask_b32 v6, v6, v7, vcc")
                a(f"v_add_u32 v{T0+jj*2+pr}, v6, v2")
        for mt in range(TM):
            for jj in range(TN):
                c = g.acc(0, jj, mt)
                a(f"v_cvt_pk_bf16_f32 v{c}, v{c}, v{c+1}")
                a(f"v_cvt_pk_bf16_f32 v{c+1}, v{c+2}, v{c+3}")
                a(f"ds_write_b32 v{T0+jj*2}, v{c} offset:{mt*16*QROW}")
                a(f"ds_write_b32 v{T0+jj*2+1}, v{c+1} offset:{mt*16*QROW}")
        a("s_waitcnt lgkmcnt(0)")
        a("s_barrier")
        a("s_cmp_ge_u32 s3, 4")
        a(f"s_cbranch_scc1 {name}_end")
        a("s_lshr_b32 s4, s3, 1")
        a("s_and_b32 s5, s3, 1")
        a("s_lshl_b32 s5, s5, 6")
        a("v_add_u32 v2, s5, v0")
        a("s_lshl_b32 s6, s68, 7")
        a("v_add_u32 v3, s6, v2")
        a("v_add_u32 v4, 16, v2")
        a(f"v_mul_u32_u24 v4, {QROW}, v4")
        a("s_mul_i32 s5, s4, 48")
        a("v_add_u32 v4, s5, v4")
        Q, KV = 8, 20
        for c in range(3):
            a(f"ds_read_b128 v[{Q+4*c}:{Q+4*c+3}], v4 offset:{16*c}")
        a(f"v_subrev_u32 v5, {14*QROW}, v4")
        for w in range(8):
            for c in range(3):
                a(f"ds_read_b128 v[{KV+12*w+4*c}:{KV+12*w+4*c+3}], v5 offset:{(14-2*w)*QROW + 96 + 16*c}")
        L = 120
        a("s_waitcnt lgkmcnt(0)")
        for d in range(9):
            for w in range(8):
                cin = "0" if d == 0 else f"v{L+w}"
                a(f"v_dot2_f32_bf16 v{L+w}, v{Q+d}, v{KV+12*w+d}, {cin}")
        for w in range(8):
            for c in range(3):
                a(f"ds_read_b128 v[{KV+12*w+4*c}:{KV+12*w+4*c+3}], v5 offset:{(14-2*w)*QROW + 192 + 16*c}")
        a("s_nop 3")
        a(f"s_mov_b32 s6, 0x{f32bits(18 ** -0.5):08x}")
        for w in range(0, 8, 2):
            a(f"v_cvt_pk_bf16_f32 v{L+8}, v{L+w}, v{L+w+1}")
            unpack(a, L + 8, L + w, L + w + 1)
            a(f"v_mul_f32 v{L+w}, s6, v{L+w}")
            a(f"v_mul_f32 v{L+w+1}, s6, v{L+w+1}")
            a(f"v_cvt_pk_bf16_f32 v{L+8}, v{L+w}, v{L+w+1}")
            unpack(a, L + 8, L + w, L + w + 1)
        a(f"v_mov_b32 v{L+9}, 0x{f32bits(-1e9):08x}")
        for w in range(1, 8):
            a(f"v_cmp_gt_u32 vcc, {2*w}, v3")
            a(f"v_cndmask_b32 v{L+w}, v{L+w}, v{L+9}, vcc")
        a(f"v_max3_f32 v{L+8}, v{L}, v{L+1}, v{L+2}")
        a(f"v_max3_f32 v{L+8}, v{L+8}, v{L+3}, v{L+4}")
        a(f"v_max3_f32 v{L+8}, v{L+8}, v{L+5}, v{L+6}")
        a(f"v_max_f32 v{L+8}, v{L+8}, v{L+7}")
        a(f"s_mov_b32 s6, 0x{f32bits(1.4426950408889634):08x}")
        for w in range(8):
            a(f"v_sub_f32 v{L+w}, v{L+w}, v{L+8}")
        for w in range(8):
            a(f"v_mul_f32 v{L+w}, s6, v{L+w}")
        for w in range(8):
            a(f"v_exp_f32 v{L+w}, v{L+w}")
        a(f"v_add_f32 v{L+8}, v{L}, v{L+1}")
        for w in range(2, 8):
            a(f"v_add_f32 v{L+8}, v{L+8}, v{L+w}")
        a(f"v_rcp_f32 v{L+8}, v{L+8}")
        for w in range(8):
            a(f"v_mul_f32 v{L+w}, v{L+w}, v{L+8}")
        for w in range(0, 8, 2):
            a(f"v_cvt_pk_bf16_f32 v{L+8}, v{L+w}, v{L+w+1}")
            unpack(a, L + 8, L + w, L + w + 1)
        a("s_waitcnt lgkmcnt(0)")
        O = 132
        for w in range(8):
            for d in range(9):
                unpack(a, KV + 12 * w + d, L + 10, L + 11)
                if w == 0:
                    a(f"v_mul_f32 v{O+2*d}, v{L+w}, v{L+10}")
                    a(f"v_mul_f32 v{O+2*d+1}, v{L+w}, v{L+11}")
                else:
                    a(f"v_fmac_f32 v{O+2*d}, v{L+w}, v{L+10}")
                    a(f"v_fmac_f32 v{O+2*d+1}, v{L+w}, v{L+11}")
        for d in range(9):
            a(f"v_cvt_pk_bf16_f32 v{Q+d}, v{O+2*d}, v{O+2*d+1}")
        a(f"v_mul_u32_u24 v3, {ROWB}, v3")
        a("s_mul_i32 s5, s69, 72")
        a("s_mul_i32 s6, s4, 36")
        a("s_add_u32 s5, s5, s6")
        a("v_add_u32 v3, s5, v3")
        a(f"buffer_store_dwordx4 v[{Q}:{Q+3}], v3, s[20:23], 0 offen")
        a(f"buffer_store_dwordx4 v[{Q+4}:{Q+7}], v3, s[20:23], 0 offen offset:16")
        a(f"buffer_store_dword v{Q+8}, v3, s[20:23], 0 offen offset:32")
        g.vmax = O + 18

    g = gemm_kernel(name, 256, BM=144, nW=1, WM=3, WN=4, TM=3, TN=2, nsteps=18, NS=6, lda=ROWB, ldw=3 * ROWB,
                    setup=setup, epilogue=epilogue, wmode='qkv', extra_lds=160 * QROW)
    return name, (256, 1, 1), (768, 1, 1), g.lds_bytes


def main(out_path):
    n = ln_kernel("ln0_kernel", 'plain', ('ka', KA_X), None, True)
    L_ln0 = ("ln0_kernel", (n, 1, 1), (256, 1, 1), 0)
    ln_kernel("ln1_kernel", 'plain', ('ws', WS_X1), None, True)
    L_ln1 = ("ln1_kernel", (n, 1, 1), (256, 1, 1), 0)
    ln_kernel("red1_kernel", 'reduce', ('ws', WS_X1), ('ws', WS_X2), True)
    L_red1 = ("red1_kernel", (n, 1, 1), (256, 1, 1), 0)
    ln_kernel("red2_kernel", 'reduce', ('ws', WS_X1), ('ka', KA_OUT), False)
    L_red2 = ("red2_kernel", (n, 1, 1), (256, 1, 1), 0)
    L_qkv = qkv_attn()
    L_wo1 = wo_kernel("wo1_kernel", ('ka', KA_X))
    L_wo2 = wo_kernel("wo2_kernel", ('ws', WS_X2))
    L_up = ffn_up()
    L_dn = ffn_down()
    seq = [L_ln0, L_qkv, L_wo1, L_ln1, L_up, L_dn, L_red1, L_qkv, L_wo2, L_ln1, L_up, L_dn, L_red2]
    hdr = ["; generated by gen/gen.py - interleaved local attention + SwiGLU FFN (2 layers)"]
    for (nm, gr, bl, lds) in seq:
        hdr.append(f"; @launch kernel={nm} grid=({gr[0]},{gr[1]},{gr[2]}) block=({bl[0]},{bl[1]},{bl[2]}) lds={lds}")
    txt = "\n".join(hdr) + "\n"
    txt += '.amdgcn_target "amdgcn-amd-amdhsa--gfx950"\n.text\n'
    for (nm, body, vg, sg) in kernels:
        txt += body
    txt += '.section .rodata,"a"\n'
    for (nm, body, vg, sg) in kernels:
        acc = ((vg + 3) // 4) * 4
        txt += f""".p2align 6
.amdhsa_kernel {nm}
  .amdhsa_next_free_vgpr {vg}
  .amdhsa_next_free_sgpr {sg}
  .amdhsa_accum_offset {acc}
  .amdhsa_group_segment_fixed_size 0
  .amdhsa_kernarg_size 80
  .amdhsa_user_sgpr_count 2
  .amdhsa_user_sgpr_kernarg_segment_ptr 1
  .amdhsa_system_sgpr_workgroup_id_x 1
.end_amdhsa_kernel
"""
    open(out_path, "w").write(txt)
    for (nm, body, vg, sg) in kernels:
        print(nm, "vgpr", vg, "sgpr", sg, "lines", body.count("\n"))


if __name__ == "__main__":
    main(sys.argv[1] if len(sys.argv) > 1 else
         "interleave_layers__sliding_local_dilated__swiglu_ffn__prompt.s")
```
